```python
import torch

def _softmax(x, axis=-1):
    return torch.softmax(x, dim=axis)
def _gelu(x):
    return torch.nn.functional.gelu(x, approximate="tanh")
def _silu(x):
    return torch.nn.functional.silu(x)
def _sigmoid(x):
    return torch.sigmoid(x)
def _layernorm(x, axis=-1, eps=1e-5):
    m = x.mean(dim=axis, keepdim=True)
    v = x.var(dim=axis, keepdim=True, unbiased=False)
    return (x - m) / torch.sqrt(v + eps)
def _scatter_add(tgt, idx, src, axis=0):
    return tgt.clone().index_add_(axis, idx, src)
def _segment_sum(src, seg, n):
    out = torch.zeros((n,) + src.shape[1:], dtype=src.dtype)
    return out.index_add_(0, seg, src)
def _pad(x, pw):
    flat = tuple(v for pair in reversed(pw) for v in pair)
    return torch.nn.functional.pad(x, flat)

kernel_name = 'concat_heads__gqa_block_cached__mha_block_cached__near_ridge'

def setup_inputs():

    _w = (lambda a: (lambda t: t.to(torch.bfloat16) if t.is_floating_point() else t)(torch.as_tensor(a)))
    def _A_setup():
        B, Sq, D = 8, 144, 448
        Hq, Hkv, Sk, Dh = 16, 8, 1024, 256
        assert Hq % Hkv == 0, (Hq, Hkv)
        return {
            "x": _w((lambda *s: torch.randn(*s, dtype=torch.bfloat16) * 0.8)(B, Sq, D)),
            "k_cache": _w((lambda *s: torch.randn(*s, dtype=torch.bfloat16) * 0.8)(B, Hkv, Sk, Dh)),
            "v_cache": _w((lambda *s: torch.randn(*s, dtype=torch.bfloat16) * 0.05)(B, Hkv, Sk, Dh)),
            "wq": _w((lambda *s: torch.randn(*s, dtype=torch.bfloat16) * 0.8)(D, Hq * Dh) * (D ** -0.5)),
            "wo": _w((lambda *s: torch.randn(*s, dtype=torch.bfloat16) * 0.05)(Hq * Dh, D) * ((Hq * Dh) ** -0.5)),
        }
    _A_in = _A_setup()

    def _B_setup():
        B, Sq, D = 8, 144, 448
        H, Sk, Dh = 16, 1024, 256
        return {
            "x": _w((lambda *s: torch.randn(*s, dtype=torch.bfloat16) * 0.8)(B, Sq, D)),
            "k_cache": _w((lambda *s: torch.randn(*s, dtype=torch.bfloat16) * 0.8)(B, H, Sk, Dh)),
            "v_cache": _w((lambda *s: torch.randn(*s, dtype=torch.bfloat16) * 0.05)(B, H, Sk, Dh)),
            "wq": _w((lambda *s: torch.randn(*s, dtype=torch.bfloat16) * 0.8)(D, H * Dh) * (D ** -0.5)),
            "wo": _w((lambda *s: torch.randn(*s, dtype=torch.bfloat16) * 0.05)(H * Dh, D) * ((H * Dh) ** -0.5)),
        }
    _B_in = _B_setup()

    return {
        "A_x": _A_in["x"],
        "A_k_cache": _A_in["k_cache"],
        "A_v_cache": _A_in["v_cache"],
        "A_wq": _A_in["wq"],
        "A_wo": _A_in["wo"],
        "B_x": _B_in["x"],
        "B_k_cache": _B_in["k_cache"],
        "B_v_cache": _B_in["v_cache"],
        "B_wq": _B_in["wq"],
        "B_wo": _B_in["wo"],
    }

def reference(A_x, A_k_cache, A_v_cache, A_wq, A_wo, B_x, B_k_cache, B_v_cache, B_wq, B_wo):
    def _A_ref(x, k_cache, v_cache, wq, wo):
        B, Sq, D = x.shape
        Hq, Dh = 16, 256
        Hkv = k_cache.shape[1]
        rep = Hq // Hkv
        q = (lambda x, *d: x.permute(*d))((x @ wq).reshape(B, Sq, Hq, Dh), 0, 2, 1, 3)
        k = (lambda x, n, axis: torch.repeat_interleave(x, n, dim=axis))(k_cache, rep, axis=1)
        v = (lambda x, n, axis: torch.repeat_interleave(x, n, dim=axis))(v_cache, rep, axis=1)
        scores = torch.einsum("bhqd,bhkd->bhqk", q, k) * (Dh ** -0.5)
        p = _softmax(scores, axis=-1)
        o = torch.einsum("bhqk,bhkd->bhqd", p, v)
        return (lambda x, *d: x.permute(*d))(o, 0, 2, 1, 3).reshape(B, Sq, Hq * Dh) @ wo

    def _B_ref(x, k_cache, v_cache, wq, wo):
        B, Sq, D = x.shape
        H, Dh = 16, 256
        q = (lambda x, *d: x.permute(*d))((x @ wq).reshape(B, Sq, H, Dh), 0, 2, 1, 3)
        scores = torch.einsum("bhqd,bhkd->bhqk", q, k_cache) * (Dh ** -0.5)
        p = _softmax(scores, axis=-1)
        o = torch.einsum("bhqk,bhkd->bhqd", p, v_cache)
        return (lambda x, *d: x.permute(*d))(o, 0, 2, 1, 3).reshape(B, Sq, H * Dh) @ wo

    a = _A_ref(A_x, A_k_cache, A_v_cache, A_wq, A_wo)
    b = _B_ref(B_x, B_k_cache, B_v_cache, B_wq, B_wo)
    return torch.concatenate([a, b], axis=-1)
```

```python
import sys, re, argparse
NAME = "concat_heads__gqa_block_cached__mha_block_cached__near_ridge"

SLOT = 16896
NSLOT = 9
PIECE = 1056
BIAS = 8.0
QSCALE = 0x3db8aa3b
PART_BYTES = 129024
D_AHEAD = 4
NBUF = 8

S_WAVE, S_XCD, S_BR, S_B, S_H = 30, 31, 32, 33, 34
SRD_X, SRD_K, SRD_V, SRD_W, SRD_O, SRD_P = 40, 44, 48, 52, 56, 60
S_T0, S_T1, S_T2 = 35, 36, 37
S_KB, S_VB, S_CNT, S_PO = 64, 65, 66, 67
S_RT1, S_RT2 = 68, 69
S_RET = 70
S_QS = 72
S_SLOT, S_KO, S_VO, S_WO, S_OO, S_C1056, S_C1024, S_C16K, S_C7168 = 64, 65, 66, 67, 68, 69, 72, 73, 74
S_LCNT = 75
S_STAMP = 80

V_LK, V_LV0, V_LV1, V_LW0, V_LW1 = 1, 2, 3, 4, 5
V_LO = 6
V_A0 = 10
V_A4 = 14
V_T = 15
V_FRAG = 16
V_RCP = 48
V_ST = 51
V_OR = 52
V_X = 53
V_QACC = 64
V_Q = 64
V_S = 112
V_E = 136
V_P = [160, 172]
V_NEGM = 184
V_TMP = 196
V_OF = 64
V_OACC = [208, 160]
A_O = 0
A_L = 192
A_Q = 204
A_ONE = 252
A_X = 0

def vr(b, n=1): return f"v{b}" if n == 1 else f"v[{b}:{b+n-1}]"
def ar(b, n=1): return f"a{b}" if n == 1 else f"a[{b}:{b+n-1}]"
def sr(b, n=1): return f"s{b}" if n == 1 else f"s[{b}:{b+n-1}]"
def mfma(d, a, b, c): return f"v_mfma_f32_16x16x32_bf16 {d}, {a}, {b}, {c}"
def qreg(rt, u): return vr(V_Q + (rt * 4 + u) * 4, 4) if u < 4 else ar(A_Q + (rt * 4 + u - 4) * 4, 4)
def sreg(kt, rt): return V_S + (kt * 3 + rt) * 4
def ereg(kt, rt): return V_E + (kt * 3 + rt) * 4
def oreg(dt, rt): return A_O + (dt * 3 + rt) * 4
def qacc(dt, rt): return V_QACC + (dt * 3 + rt) * 4
def ofrag(rt, u): return V_OF + (rt * 8 + u) * 4
def oacc(par, ct, rt): return V_OACC[par] + (rt * 4 + ct) * 4

class Group:
    def __init__(self, mf, reads, extra_wait=None):
        self.mf = mf
        self.reads = reads
        self.extra_wait = extra_wait
        self.pre_read = []

class Filler:
    def __init__(self, text, cost=1, earliest=0, after=None, dist=0, kind="valu", deadline=None, asap=False):
        self.deadline = deadline; self.asap = asap
        self.text = text; self.cost = cost; self.earliest = earliest
        self.after = after or []
        self.kind = kind
        self.gap = None
        self.prio = 1 if cost == 2 else 2

def build_block(groups, nxt, fragbase, fillers, tail_only=False):
    seq = groups + nxt
    f = fragbase
    for g in seq:
        if g.reads:
            g.buf = V_FRAG + 4 * (f % NBUF); f += 1
        else:
            g.buf = None
    rg = [g for g in seq if g.reads]
    idx = {id(g): i for i, g in enumerate(rg)}
    ngap = 3 * len(groups)
    gaps = [[] for _ in range(ngap)]
    used = [0] * ngap
    nread_in_block = sum(1 for g in groups if g.reads)
    pend_pre = []
    for gi, g in enumerate(groups):
        if not g.reads: continue
        i = idx[id(g)]
        if i + D_AHEAD < len(rg):
            t = rg[i + D_AHEAD]
            pre = t.pre_read
            gp = 3 * gi + (2 if len(t.reads) == 1 else 0)
            if pre:
                pend_pre.append((gp, pre))
            for r in t.reads:
                gaps[gp].append((fmt_read(r, t.buf), 1, "ds")); used[gp] += 1
    waits = {}
    for gi, g in enumerate(seq[:len(groups) + 1]):
        if gi == 0: continue
        w = wait_for(g, rg, idx)
        if w:
            gp = 3 * gi - 1
            waits[gp] = w; used[gp] += 1
    for (gp, pre) in pend_pre:
        p = gp - 1
        for (txt, kind) in reversed(pre):
            cost = 2 if kind == "barrier" else 1
            q = p
            while q >= max(0, gp - 6) and used[q] + cost > 2: q -= 1
            if q < max(0, gp - 6): q = p
            gaps[q].append((txt, cost, kind)); used[q] += cost
            if kind == "barrier": p = q - 1 if q > 0 else 0
    fillers = sorted(fillers, key=lambda f: f.prio)
    for fl in fillers:
        e = fl.earliest
        for (dep, dist) in fl.after:
            e = max(e, dep.gap + dist)
        p = e
        while p < ngap and used[p] + fl.cost > 2: p += 1
        if fl.cost == 1 and p < ngap and used[p] == 0 and not fl.asap:
            for q in range(p + 1, min(ngap, p + 3)):
                if used[q] == 1: p = q; break
        if p >= ngap:
            p = ngap - 1
        if fl.deadline is not None: assert p <= fl.deadline, (fl.text, p, fl.deadline)
        fl.gap = p
        gaps[p].append((fl.text, fl.cost, fl.kind)); used[p] += fl.cost
    out = []
    for gi, g in enumerate(groups):
        A = vr(g.buf, 4) if g.buf is not None else None
        for j in range(3):
            out.append(g.mf[j].replace("{A}", A) if A else g.mf[j])
            gp = 3 * gi + j
            items = gaps[gp]
            order = {"barrier": 0, "ds": 1, "salu": 2, "valu": 3, "vmem": 3, "branch": 5}
            stable = sorted(range(len(items)), key=lambda k: (order[items[k][2]], k))
            for k in stable: out.append(items[k][0])
            if gp in waits:
                if out[-1].startswith("s_cbranch"):
                    b = out.pop(); out.append(waits[gp]); out.append(b)
                else:
                    out.append(waits[gp])
    over = sum(max(0, u - 2) for u in used)
    out.insert(0, f"; block: {len(groups)} groups, overflow slots {over}")
    return out, (fragbase + nread_in_block) % NBUF

def fmt_read(r, buf):
    return r.replace("{D0}", vr(buf, 2)).replace("{D1}", vr(buf + 2, 2)).replace("{D4}", vr(buf, 4))

def wait_for(g, rg, idx):
    parts = []
    if g.extra_wait: parts.append(g.extra_wait)
    if g.reads:
        i = idx[id(g)]
        n = sum(len(x.reads) for x in rg[i + 1:i + D_AHEAD])
        parts.append(f"lgkmcnt({n})")
    return ("s_waitcnt " + " ".join(parts)) if parts else None

def head_reads(groups, fragbase):
    out = []
    rg = [g for g in groups if g.reads][:D_AHEAD]
    for i, g in enumerate(rg):
        buf = V_FRAG + 4 * ((fragbase + i) % NBUF)
        for (txt, kind) in g.pre_read: out.append(txt)
        out.append("s_nop 0")
        for r in g.reads: out.append(fmt_read(r, buf))
    return out

def slot_base(n): return (n % NSLOT) * SLOT

def w_groups(ks, tile, barrier):
    a0 = V_A0 + 2 * (ks & 1)
    G = []
    for u in range(8):
        for half in range(2):
            dt = 2 * u + half
            areg = a0 + (u & 1)
            off = u * 64 + half * 8
            reads = [f"ds_read_b64_tr_b16 {{D0}}, {vr(areg)} offset:{off}",
                     f"ds_read_b64_tr_b16 {{D1}}, {vr(areg)} offset:{off + 2112}"]
            mf = []
            for rt in range(3):
                d = vr(qacc(dt, rt), 4)
                mf.append(mfma(d, "{A}", ar(A_X + (ks * 3 + rt) * 4, 4), "0" if ks == 0 else d))
            G.append(Group(mf, reads))
    G[0].extra_wait = f"vmcnt({42 - 3 * (ks + 1)})"
    pre = []
    pre.append((f"v_add_u32 {vr(a0)}, {slot_base(tile)}, {vr(V_LW0)}", "valu"))
    pre.append((f"v_add_u32 {vr(a0 + 1)}, {slot_base(tile)}, {vr(V_LW1)}", "valu"))
    if barrier: pre.append(("s_barrier", "barrier"))
    G[0].pre_read = pre
    return G

def qk_groups(first):
    G = []
    for kt in range(2):
        for u in range(8):
            reads = [f"ds_read_b128 {{D4}}, {vr(V_A0)} offset:{kt * 8448 + u * 64}"]
            mf = []
            for rt in range(3):
                d = vr(sreg(kt, rt), 4)
                c = d if u else ("0" if first else vr(V_NEGM + 4 * rt, 4))
                mf.append(mfma(d, "{A}", qreg(rt, u), c))
            G.append(Group(mf, reads))
    return G

def pv_groups(par, first, abase=V_A0 + 1):
    G = []
    for dt in range(16):
        areg = abase + ((dt >> 2) & 1)
        reads = [f"ds_read_b64_tr_b16 {{D0}}, {vr(areg)} offset:{dt * 32}",
                 f"ds_read_b64_tr_b16 {{D1}}, {vr(areg)} offset:{dt * 32 + 8448}"]
        mf = []
        for rt in range(3):
            d = ar(oreg(dt, rt), 4)
            mf.append(mfma(d, "{A}", vr(V_P[par] + 4 * rt, 4), "0" if first else d))
        G.append(Group(mf, reads))
    mf = []
    for rt in range(3):
        d = ar(A_L + 4 * rt, 4)
        mf.append(mfma(d, ar(A_ONE, 4), vr(V_P[par] + 4 * rt, 4), "0" if first else d))
    G.append(Group(mf, []))
    return G

def o_groups(c):
    G = []
    par = c & 1
    for u in range(8):
        for ct in range(4):
            areg = V_A0 + ct
            off = (u & 3) * 4224
            reads = [f"ds_read_b64_tr_b16 {{D0}}, {vr(areg)} offset:{off}",
                     f"ds_read_b64_tr_b16 {{D1}}, {vr(areg)} offset:{off + 2112}"]
            mf = []
            for rt in range(3):
                d = vr(oacc(par, ct, rt), 4)
                mf.append(mfma(d, "{A}", vr(ofrag(rt, u), 4), "0" if u == 0 else d))
            g = Group(mf, reads)
            if (u & 3) == 0:
                tile = 78 + 2 * c + (u >> 2)
                g.pre_read = [(f"v_add_u32 {vr(areg)}, {slot_base(tile)}, {vr(V_LO + ct)}", "valu")]
            G.append(g)
    G[0].pre_read.append(("s_barrier", "barrier"))
    return G

def k_pre(static_tile=None):
    if static_tile is not None:
        return [(f"v_add_u32 {vr(V_A0)}, {slot_base(static_tile)}, {vr(V_LK)}", "valu"), ("s_barrier", "barrier")]
    return [(f"v_add_u32 {vr(V_A0)}, {sr(S_KB)}, {vr(V_LK)}", "valu"), ("s_barrier", "barrier")]
def v_pre(static_tile=None, barrier=False, abase=V_A0 + 1):
    b = str(slot_base(static_tile)) if static_tile is not None else sr(S_VB)
    r = [(f"v_add_u32 {vr(abase)}, {b}, {vr(V_LV0)}", "valu"), (f"v_add_u32 {vr(abase + 1)}, {b}, {vr(V_LV1)}", "valu")]
    if barrier: r.append(("s_barrier", "barrier"))
    return r

def softmax_fillers(parw, site):
    F = []
    cv = []
    for kt in range(2):
        ready = 3 * (8 * kt + 7) + 2 + 2
        for rt in range(3):
            ex = []
            for e in range(4):
                f = Filler(f"v_exp_f32 {vr(ereg(kt, rt) + e)}, {vr(sreg(kt, rt) + e)}", 2, ready)
                F.append(f); ex.append(f)
                if e & 1:
                    c = Filler(f"v_cvt_pk_bf16_f32 {vr(V_P[parw] + 4 * rt + 2 * kt + (e >> 1))}, {vr(ereg(kt, rt) + e - 1)}, {vr(ereg(kt, rt) + e)}",
                               1, 0, [(ex[e - 1], 1), (ex[e], 1)])
                    F.append(c); cv.append((V_P[parw] + 4 * rt + 2 * kt + (e >> 1), c))
    prev = None
    i = 0
    ors = []
    while i < len(cv):
        if prev is None:
            a, b, c = cv[0], cv[1], cv[2]; i = 3
            f = Filler(f"v_or3_b32 {vr(V_OR)}, {vr(a[0])}, {vr(b[0])}, {vr(c[0])}", 1, 0, [(a[1], 0), (b[1], 0), (c[1], 0)])
        elif i + 1 < len(cv):
            a, b = cv[i], cv[i + 1]; i += 2
            f = Filler(f"v_or3_b32 {vr(V_OR)}, {vr(V_OR)}, {vr(a[0])}, {vr(b[0])}", 1, 0, [(a[1], 0), (b[1], 0), (prev, 0)])
        else:
            a = cv[i]; i += 1
            f = Filler(f"v_or_b32 {vr(V_OR)}, {vr(V_OR)}, {vr(a[0])}", 1, 0, [(a[1], 0), (prev, 0)])
        ors.append(f); prev = f
    G = []
    oi = 0
    ncv = 0
    need = [3, 5, 7, 9, 11, 12]
    for f in F:
        G.append(f)
        if f.text.startswith("v_cvt"):
            ncv += 1
            while oi < len(ors) and need[oi] <= ncv:
                G.append(ors[oi]); oi += 1
    a = Filler(f"v_and_b32 {vr(V_OR)}, 0x40004000, {vr(V_OR)}", 1, 0, [(prev, 0)])
    c = Filler(f"v_cmp_ne_u32 vcc, 0, {vr(V_OR)}", 1, 0, [(a, 0)])
    G += [a, c]
    return G, c

def ring_adv(s):
    return [Filler(f"s_add_u32 {sr(s)}, {sr(s)}, {2 * SLOT}", 1, 0, kind="salu"),
            ]

def dbgdump(A, regs):
    A("s_mul_i32 s90, s2, 3")
    A(f"s_add_u32 s90, s90, {sr(S_WAVE)}")
    A("s_lshl_b32 s90, s90, 16")
    A("s_add_u32 s92, s28, 0x4000000")
    A("s_addc_u32 s93, s29, 0")
    A("s_add_u32 s92, s92, s90")
    A("s_addc_u32 s93, s93, 0")
    A("v_lshlrev_b32 v60, 2, v0")
    for i, (k, r) in enumerate(regs):
        if k == "a":
            A(f"v_accvgpr_read_b32 v61, a{r}")
            A(f"global_store_dword v60, v61, s[92:93]")
        else:
            A(f"global_store_dword v60, v{r}, s[92:93]")
        A("v_add_u32 v60, 256, v60")
    A("s_waitcnt vmcnt(0)")

def gen(opts):
    L = []
    A = L.append
    nt = " nt" if opts.nt else ""
    xnt = " nt" if opts.xnt else ""
    stp = (" " + opts.stp) if opts.stp else ""
    ldp = (" " + opts.ldp) if opts.ldp else ""
    A(f"; @launch kernel=main_kernel grid=(256,1,1) block=(256,1,1) lds={NSLOT * SLOT}")
    A("; @launch kernel=reduce_kernel grid=(504,1,1) block=(256,1,1) lds=0")
    A('.amdgcn_target "amdgcn-amd-amdhsa--gfx950"')
    A(".text")
    A(".globl main_kernel")
    A(".p2align 8")
    A(".type main_kernel,@function")
    A("main_kernel:")
    A("s_cmp_ge_u32 s2, 256")
    A("s_cbranch_scc1 L_end")
    nstamp = [0]
    def stamp():
        if opts.stamps:
            A(f"s_memrealtime {sr(S_STAMP + 2 * nstamp[0], 2)}")
            nstamp[0] += 1
    stamp()
    A("s_load_dwordx16 s[4:19], s[0:1], 0")
    A("s_load_dwordx8 s[20:27], s[0:1], 64")
    A("s_load_dwordx2 s[28:29], s[0:1], 96")
    A("v_lshrrev_b32 v1, 6, v0")
    A("v_and_b32 v0, 63, v0")
    A(f"v_readfirstlane_b32 {sr(S_WAVE)}, v1")
    A(f"s_and_b32 {sr(S_XCD)}, s2, 7")
    A(f"s_lshr_b32 {sr(S_T0)}, s2, 3")
    A(f"s_lshr_b32 {sr(S_BR)}, {sr(S_T0)}, 4")
    A(f"s_and_b32 {sr(S_T0)}, {sr(S_T0)}, 15")
    A(f"s_lshr_b32 {sr(S_B)}, {sr(S_T0)}, 1")
    A(f"s_and_b32 {sr(S_T0)}, {sr(S_T0)}, 1")
    A(f"s_lshl_b32 {sr(S_H)}, {sr(S_XCD)}, 1")
    A(f"s_add_u32 {sr(S_H)}, {sr(S_H)}, {sr(S_T0)}")
    A(f"s_lshl_b32 {sr(S_T0)}, {sr(S_B)}, 3")
    A(f"s_add_u32 {sr(S_T0)}, {sr(S_T0)}, {sr(S_XCD)}")
    A(f"s_lshl_b32 {sr(S_T1)}, {sr(S_B)}, 4")
    A(f"s_add_u32 {sr(S_T1)}, {sr(S_T1)}, {sr(S_H)}")
    A("s_waitcnt lgkmcnt(0)")
    A(f"s_cmp_eq_u32 {sr(S_BR)}, 0")
    A(f"s_cselect_b32 {sr(S_T0)}, {sr(S_T0)}, {sr(S_T1)}")
    for srd, pa, pb in ((SRD_X, 4, 14), (SRD_K, 6, 16), (SRD_V, 8, 18), (SRD_W, 10, 20), (SRD_O, 12, 22)):
        A(f"s_cselect_b32 {sr(srd)}, s{pa}, s{pb}")
        A(f"s_cselect_b32 {sr(srd + 1)}, s{pa + 1}, s{pb + 1}")
    A(f"s_lshr_b32 {sr(S_T1)}, {sr(S_T0)}, 13")
    A(f"s_lshl_b32 {sr(S_T0)}, {sr(S_T0)}, 19")
    for srd in (SRD_K, SRD_V):
        A(f"s_add_u32 {sr(srd)}, {sr(srd)}, {sr(S_T0)}")
        A(f"s_addc_u32 {sr(srd + 1)}, {sr(srd + 1)}, {sr(S_T1)}")
        A(f"s_mov_b32 {sr(srd + 2)}, 524288")
        A(f"s_mov_b32 {sr(srd + 3)}, 0x20000")
    A(f"s_mul_i32 {sr(S_T0)}, {sr(S_B)}, 129024")
    A(f"s_add_u32 {sr(SRD_X)}, {sr(SRD_X)}, {sr(S_T0)}")
    A(f"s_addc_u32 {sr(SRD_X + 1)}, {sr(SRD_X + 1)}, 0")
    A(f"s_mov_b32 {sr(SRD_X + 2)}, 129024")
    A(f"s_mov_b32 {sr(SRD_X + 3)}, 0x20000")
    A(f"s_lshl_b32 {sr(S_T0)}, {sr(S_H)}, 9")
    A(f"s_add_u32 {sr(SRD_W)}, {sr(SRD_W)}, {sr(S_T0)}")
    A(f"s_addc_u32 {sr(SRD_W + 1)}, {sr(SRD_W + 1)}, 0")
    A(f"s_sub_u32 {sr(SRD_W + 2)}, 3670016, {sr(S_T0)}")
    A(f"s_mov_b32 {sr(SRD_W + 3)}, 0x20000")
    A(f"s_mul_i32 {sr(S_T0)}, {sr(S_H)}, 229376")
    A(f"s_add_u32 {sr(SRD_O)}, {sr(SRD_O)}, {sr(S_T0)}")
    A(f"s_addc_u32 {sr(SRD_O + 1)}, {sr(SRD_O + 1)}, 0")
    A(f"s_mov_b32 {sr(SRD_O + 2)}, 229376")
    A(f"s_mov_b32 {sr(SRD_O + 3)}, 0x20000")
    A(f"s_lshl_b32 {sr(S_T0)}, {sr(S_BR)}, 3")
    A(f"s_add_u32 {sr(S_T0)}, {sr(S_T0)}, {sr(S_B)}")
    A(f"s_lshl_b32 {sr(S_T0)}, {sr(S_T0)}, 4")
    A(f"s_add_u32 {sr(S_T0)}, {sr(S_T0)}, {sr(S_H)}")
    A(f"s_mul_i32 {sr(S_T0)}, {sr(S_T0)}, {PART_BYTES}")
    if opts.wsoff:
        A(f"s_add_u32 {sr(S_T0)}, {sr(S_T0)}, {opts.wsoff}")
    A(f"s_add_u32 {sr(SRD_P)}, s28, {sr(S_T0)}")
    A(f"s_addc_u32 {sr(SRD_P + 1)}, s29, 0")
    A(f"s_mov_b32 {sr(SRD_P + 2)}, {PART_BYTES}")
    A(f"s_mov_b32 {sr(SRD_P + 3)}, 0x20000")
    A(f"s_cmp_eq_u32 {sr(S_WAVE)}, 3")
    A("s_cbranch_scc1 L_loader")

    A("v_and_b32 v2, 15, v0")
    A("v_lshrrev_b32 v3, 4, v0")
    A(f"s_mul_i32 {sr(S_T0)}, {sr(S_WAVE)}, {48 * 896}")
    A(f"v_mul_u32_u24 v4, 896, v2")
    A(f"v_lshl_add_u32 v4, v3, 4, v4")
    A(f"v_add_u32 {vr(V_X)}, {sr(S_T0)}, v4")
    A(f"s_mov_b32 {sr(S_RT1)}, 14336")
    A(f"s_mov_b32 {sr(S_RT2)}, 28672")
    for ks in range(14):
        for rt in range(3):
            so = ["0", sr(S_RT1), sr(S_RT2)][rt]
            A(f"buffer_load_dwordx4 {ar(A_X + (ks * 3 + rt) * 4, 4)}, {vr(V_X)}, {sr(SRD_X, 4)}, {so} offen offset:{ks * 64}{xnt}")
    t0, t1, t2, t3 = V_X + 1, V_X + 2, V_X + 3, V_X + 4
    n_, g_ = V_X + 5, V_X + 6
    A(f"v_mov_b32 {vr(n_)}, v2")
    A(f"v_mov_b32 {vr(g_)}, v3")
    A(f"v_lshrrev_b32 {vr(t0)}, 1, {vr(n_)}")
    A(f"v_mul_u32_u24 {vr(t0)}, {PIECE}, {vr(t0)}")
    A(f"v_and_b32 {vr(t1)}, 1, {vr(n_)}")
    A(f"v_lshl_add_u32 {vr(t0)}, {vr(t1)}, 9, {vr(t0)}")
    A(f"v_xor_b32 {vr(t1)}, {vr(g_)}, {vr(t1)}")
    A(f"v_lshl_add_u32 {vr(V_LK)}, {vr(t1)}, 4, {vr(t0)}")
    A(f"v_lshrrev_b32 {vr(t2)}, 2, {vr(n_)}")
    A(f"v_and_b32 {vr(t3)}, 3, {vr(n_)}")
    A(f"v_lshrrev_b32 {vr(t0)}, 1, {vr(t2)}")
    A(f"v_lshl_add_u32 {vr(t0)}, {vr(g_)}, 1, {vr(t0)}")
    A(f"v_mul_u32_u24 {vr(t0)}, {PIECE}, {vr(t0)}")
    A(f"v_lshl_add_u32 {vr(t0)}, {vr(t3)}, 3, {vr(t0)}")
    A(f"v_and_b32 {vr(t1)}, 1, {vr(t2)}")
    A(f"v_mul_u32_u24 {vr(V_LV0)}, 640, {vr(t1)}")
    A(f"v_add_u32 {vr(V_LV0)}, {vr(V_LV0)}, {vr(t0)}")
    A(f"v_mul_u32_u24 {vr(V_LV1)}, 384, {vr(t1)}")
    A(f"v_add_u32 {vr(V_LV1)}, {vr(V_LV1)}, {vr(t0)}")
    A(f"v_lshrrev_b32 {vr(t0)}, 1, {vr(t2)}")
    A(f"v_lshl_add_u32 {vr(t0)}, {vr(g_)}, 2, {vr(t0)}")
    A(f"v_mul_u32_u24 {vr(t0)}, {PIECE}, {vr(t0)}")
    A(f"v_lshl_add_u32 {vr(t0)}, {vr(t3)}, 4, {vr(t0)}")
    A(f"v_mul_u32_u24 {vr(V_LW0)}, 576, {vr(t1)}")
    A(f"v_add_u32 {vr(V_LW0)}, {vr(V_LW0)}, {vr(t0)}")
    A(f"v_mul_u32_u24 {vr(V_LW1)}, 448, {vr(t1)}")
    A(f"v_add_u32 {vr(V_LW1)}, {vr(V_LW1)}, {vr(t0)}")
    A(f"v_lshrrev_b32 {vr(t0)}, 1, {vr(g_)}")
    A(f"v_mul_u32_u24 {vr(t0)}, {PIECE}, {vr(t0)}")
    A(f"v_lshl_add_u32 {vr(t0)}, {vr(t3)}, 3, {vr(t0)}")
    A(f"v_and_b32 {vr(t1)}, 1, {vr(g_)}")
    A(f"v_lshl_add_u32 {vr(t1)}, {vr(t1)}, 2, {vr(t2)}")
    A(f"v_lshl_add_u32 {vr(t0)}, {vr(t1)}, 7, {vr(t0)}")
    A(f"v_lshrrev_b32 {vr(t1)}, 1, {vr(t1)}")
    for q in range(4):
        A(f"v_xor_b32 {vr(t2)}, {q}, {vr(t1)}")
        A(f"v_lshl_add_u32 {vr(V_LO + q)}, {vr(t2)}, 5, {vr(t0)}")
    A(f"v_lshlrev_b32 {vr(V_ST)}, 4, v0")
    A(f"s_mul_i32 {sr(S_PO)}, {sr(S_WAVE)}, 6144")
    A(f"s_mov_b32 {sr(S_QS)}, {QSCALE:#x}")
    A(f"v_mov_b32 {vr(t0)}, 0x3f803f80")
    for i in range(4): A(f"v_accvgpr_write_b32 {ar(A_ONE + i)}, {vr(t0)}")

    WG = [w_groups(ks, ks, barrier=(ks % 2 == 0)) for ks in range(14)]
    QK0 = qk_groups(True); QK0[0].pre_read = k_pre(14)
    def att_step(par_r, first, static=None):
        q = qk_groups(False); p = pv_groups(par_r, first)
        if static:
            q[0].pre_read = k_pre(static[0])
        else:
            q[0].pre_read = [("s_barrier", "barrier")]
        return q + p
    fb = 0
    allw = [g for G in WG for g in G]
    L.extend(head_reads(allw, fb))
    A(wait_for(allw[0], [g for g in allw if g.reads], {id(g): i for i, g in enumerate(allw)}))
    stamp()
    for ks in range(14):
        nxt = WG[ks + 1] if ks < 13 else []
        o, fb = build_block(WG[ks], nxt, fb, [])
        L.extend(o)
    stamp()
    A("s_nop 7")
    for u in range(8):
        for rt in range(3):
            tmp = V_FRAG + 4 * ((u * 3 + rt) % 3)
            for half in range(2):
                b = qacc(2 * u + half, rt)
                A(f"v_pk_mul_f32 {vr(b, 2)}, {vr(b, 2)}, {sr(S_QS, 2)} op_sel_hi:[1,0]")
                A(f"v_pk_mul_f32 {vr(b + 2, 2)}, {vr(b + 2, 2)}, {sr(S_QS, 2)} op_sel_hi:[1,0]")
            for half in range(2):
                b = qacc(2 * u + half, rt)
                A(f"v_cvt_pk_bf16_f32 {vr(tmp + 2 * half)}, {vr(b)}, {vr(b + 1)}")
                A(f"v_cvt_pk_bf16_f32 {vr(tmp + 2 * half + 1)}, {vr(b + 2)}, {vr(b + 3)}")
            if u >= 4:
                for i in range(4): A(f"v_accvgpr_write_b32 {ar(A_Q + (rt * 4 + u - 4) * 4 + i)}, {vr(tmp + i)}")
            else:
                for i in range(4): A(f"v_accvgpr_write_b32 {ar((rt * 4 + u) * 4 + i)}, {vr(tmp + i)}")
    for i in range(48): A(f"v_accvgpr_read_b32 {vr(V_Q + i)}, {ar(i)}")
    if opts.dbg == "q":
        dump = [("v", V_Q + i) for i in range(48)] + [("a", A_Q + i) for i in range(48)]
        dbgdump(A, dump)
    st0 = att_step(0, True, static=(15, 16))
    L.extend(head_reads(QK0, fb))
    A(wait_for(QK0[0], QK0, {id(g): i for i, g in enumerate(QK0)}))
    o, fb = build_block(QK0, st0, fb, [])
    L.extend(o)
    A("s_nop 7")
    def rowmax(dst):
        for rt in range(3):
            a, b = sreg(0, rt), sreg(1, rt)
            d = dst + rt
            A(f"v_max3_f32 {vr(d)}, {vr(a)}, {vr(a + 1)}, {vr(a + 2)}")
            A(f"v_max3_f32 {vr(d)}, {vr(d)}, {vr(a + 3)}, {vr(b)}")
            A(f"v_max3_f32 {vr(d)}, {vr(d)}, {vr(b + 1)}, {vr(b + 2)}")
            A(f"v_max_f32 {vr(d)}, {vr(d)}, {vr(b + 3)}")
        for sw in ("v_permlane16_swap_b32", "v_permlane32_swap_b32"):
            for rt in range(3): A(f"v_mov_b32 {vr(dst + 3 + rt)}, {vr(dst + rt)}")
            A("s_nop 1")
            for rt in range(3): A(f"{sw} {vr(dst + rt)}, {vr(dst + 3 + rt)}")
            A("s_nop 1")
            for rt in range(3): A(f"v_max_f32 {vr(dst + rt)}, {vr(dst + rt)}, {vr(dst + 3 + rt)}")
    def exp_pack(par):
        for kt in range(2):
            for rt in range(3):
                for e in range(4): A(f"v_exp_f32 {vr(ereg(kt, rt) + e)}, {vr(sreg(kt, rt) + e)}")
        for kt in range(2):
            for rt in range(3):
                for h in range(2):
                    A(f"v_cvt_pk_bf16_f32 {vr(V_P[par] + 4 * rt + 2 * kt + h)}, {vr(ereg(kt, rt) + 2 * h)}, {vr(ereg(kt, rt) + 2 * h + 1)}")
    rowmax(V_TMP)
    A(f"v_mov_b32 {vr(V_TMP + 6)}, {BIAS}" if False else f"v_mov_b32 {vr(V_TMP + 6)}, 0x41000000")
    for rt in range(3):
        for i in range(4): A(f"v_sub_f32 {vr(V_NEGM + 4 * rt + i)}, -{vr(V_TMP + rt)}, {vr(V_TMP + 6)}")
        for kt in range(2):
            for e in range(4): A(f"v_add_f32 {vr(sreg(kt, rt) + e)}, {vr(sreg(kt, rt) + e)}, {vr(V_NEGM + 4 * rt)}")
    exp_pack(0)
    A(f"s_mov_b32 {sr(S_KB)}, {slot_base(15)}")
    A(f"s_mov_b32 {sr(S_CNT)}, 15")
    stamp()
    def adv():
        F = []
        for d, s in ((S_VB, S_KB), (S_KB, S_VB)):
            for txt in (f"s_add_u32 {sr(d)}, {sr(s)}, {SLOT}", f"s_cmp_eq_u32 {sr(d)}, {NSLOT * SLOT}", f"s_cselect_b32 {sr(d)}, 0, {sr(d)}"):
                f = Filler(txt, 1, 0, [(F[-1], 0)] if F else [], kind="salu"); f.prio = 0
                F.append(f)
        return F
    slow_sites = []
    def emit_att(groups, nxt, par_w, site, dyn, loop_tail=None):
        nonlocal fb
        F, cmpf = softmax_fillers(par_w, site)
        pre = []
        if dyn:
            pre = adv()
        if dyn:
            for (d, l) in ((V_A0 + 1, V_LV0), (V_A0 + 2, V_LV1)):
                f = Filler(f"v_add_u32 {vr(d)}, {sr(S_VB)}, {vr(l)}", 1, 21, [(pre[-1], 1)], deadline=3 * (16 - D_AHEAD) - 1, asap=True); f.prio = 0
                pre.append(f)
        if nxt[0].reads[0].startswith("ds_read_b128"):
            f = Filler(f"v_add_u32 {vr(V_A0)}, {sr(S_KB)}, {vr(V_LK)}", 1, 3 * (16 - D_AHEAD), deadline=3 * (32 - D_AHEAD) + 1); f.prio = 0
            pre.append(f)
        for f in F[-8:]: f.asap = True
        br = Filler(f"s_cbranch_vccnz L_slow{site}", 1, 3 * len(groups) - 1, [(cmpf, 2)], kind="branch")
        extra = []
        if loop_tail:
            f1 = Filler(f"s_sub_u32 {sr(S_CNT)}, {sr(S_CNT)}, 1", 1, 0, [(pre[5], 0)], kind="salu"); f1.prio = 0
            extra = [f1]
        o, fb = build_block(groups, nxt, fb, pre + extra + F + [br])
        L.extend(o)
        A(f"L_back{site}:")
        slow_sites.append((site, par_w))
    bodyA = att_step(1, False); bodyB = att_step(0, False)
    emit_att(st0, bodyA, 1, 0, True)
    A(".p2align 6" if opts.align else "")
    A("L_loop:")
    emit_att(bodyA, bodyB, 0, 1, True)
    emit_att(bodyB, att_step(1, False), 1, 2, True, loop_tail=True)
    A(f"s_cmp_lg_u32 {sr(S_CNT)}, 1")
    A("s_cbranch_scc1 L_loop")
    bodyA2 = att_step(1, False); bodyB2 = att_step(0, False)
    PV31 = pv_groups(1, False, V_A0 + 3); PV31[0].pre_read = v_pre(77, barrier=True, abase=V_A0 + 3)
    emit_att(bodyA2, bodyB2, 0, 3, True)
    emit_att(bodyB2, PV31, 1, 4, True)
    OG = [o_groups(c) for c in range(7)]
    o, fb = build_block(PV31, [], fb, [])
    L.extend(o)
    stamp()
    A("s_nop 7")
    if opts.dbg == "o":
        dbgdump(A, [("a", i) for i in range(204)])
    for rt in range(3):
        A(f"v_accvgpr_read_b32 {vr(V_RCP + rt)}, {ar(A_L + 4 * rt)}")
    for rt in range(3):
        A(f"v_rcp_f32 {vr(V_RCP + rt)}, {vr(V_RCP + rt)}")
    L.extend(head_reads(OG[0], fb))
    for u in range(8):
        for rt in range(3):
            tmp = V_TMP + 8 * 0
            for hh in range(2):
                for e in range(4): A(f"v_accvgpr_read_b32 {vr(tmp + 4 * hh + e)}, {ar(oreg(2 * u + hh, rt) + e)}")
            for hh in range(2):
                for h in range(2):
                    A(f"v_cvt_pk_bf16_f32 {vr(ofrag(rt, u) + 2 * hh + h)}, {vr(tmp + 4 * hh + 2 * h)}, {vr(tmp + 4 * hh + 2 * h + 1)}")
    A(wait_for(OG[0][0], OG[0], {id(g): i for i, g in enumerate(OG[0])}))
    A("s_nop 0")
    def epi(c):
        par = c & 1
        F = []
        prev = None
        for rt in range(3):
            for hf in range(2):
                b = oacc(par, 2 * hf, rt)
                mu = [Filler(f"v_mul_f32 {vr(b + i)}, {vr(V_RCP + rt)}, {vr(b + i)}", 1, 4) for i in range(8)]
                cv = []
                for i in range(4):
                    dep = [(mu[2 * i], 0), (mu[2 * i + 1], 0)] + ([(cv[-1], 0)] if cv else [])
                    cv.append(Filler(f"v_cvt_pk_bf16_f32 {vr(b + i)}, {vr(b + 2 * i)}, {vr(b + 2 * i + 1)}", 1, 0, dep))
                off = (c * 9 + rt) * 2048 + hf * 1024
                so = Filler(f"s_add_u32 {sr(S_T1)}, {sr(S_PO)}, {off}", 1, 0, [(prev, 0)] if prev else [], kind="salu")
                st = Filler(f"buffer_store_dwordx4 {vr(b, 4)}, {vr(V_ST)}, {sr(SRD_P, 4)}, {sr(S_T1)} offen{stp}", 1, 0, [(cv[-1], 1), (so, 1)], kind="vmem")
                prev = st
                F += mu + cv + [so, st]
        return F
    for c in range(7):
        nxt = OG[c + 1] if c < 6 else []
        o, fb = build_block(OG[c], nxt, fb, epi(c - 1) if c else [])
        L.extend(o)
    A("s_nop 7")
    for f in epi(6): A(f.text)
    stamp()
    A("s_waitcnt vmcnt(0)")
    stamp()
    if opts.stamps:
        A("s_waitcnt lgkmcnt(0)")
        A(f"s_cmp_lg_u32 {sr(S_WAVE)}, 0")
        A("s_cbranch_scc1 L_end")
        A("s_add_u32 s28, s28, 0x8000000")
        A("s_addc_u32 s29, s29, 0")
        A("s_lshl_b32 s3, s2, 9")
        A("s_add_u32 s28, s28, s3")
        A("s_addc_u32 s29, s29, 0")
        A("v_mov_b32 v3, 0")
        for i in range(nstamp[0]):
            A(f"v_mov_b32 v4, {sr(S_STAMP + 2 * i)}")
            A(f"v_mov_b32 v5, {sr(S_STAMP + 2 * i + 1)}")
            A(f"global_store_dwordx2 v3, v[4:5], s[28:29] offset:{8 * i}")
        A("s_waitcnt vmcnt(0)")
    A("s_endpgm")
    for site, par in slow_sites:
        A(f"L_slow{site}:")
        A(f"s_call_b64 {sr(S_RET, 2)}, L_fix")
        exp_pack(par)
        A("s_nop 1")
        A(f"s_branch L_back{site}")
    A("L_fix:")
    A("s_nop 15")
    rowmax(V_TMP)
    A(f"v_mov_b32 {vr(V_TMP + 6)}, 0x41000000")
    for rt in range(3):
        A(f"v_add_f32 {vr(V_TMP + rt)}, {vr(V_TMP + rt)}, {vr(V_TMP + 6)}")
        A(f"v_max_f32 {vr(V_TMP + rt)}, 0, {vr(V_TMP + rt)}")
        A(f"v_exp_f32 {vr(V_TMP + 3 + rt)}, -{vr(V_TMP + rt)}")
        for i in range(4): A(f"v_sub_f32 {vr(V_NEGM + 4 * rt + i)}, {vr(V_NEGM + 4 * rt + i)}, {vr(V_TMP + rt)}")
        for kt in range(2):
            for e in range(4): A(f"v_sub_f32 {vr(sreg(kt, rt) + e)}, {vr(sreg(kt, rt) + e)}, {vr(V_TMP + rt)}")
    for dt in range(17):
        for rt in range(3):
            b = oreg(dt, rt) if dt < 16 else A_L + 4 * rt
            for e in range(4): A(f"v_accvgpr_read_b32 {vr(V_TMP + 8 + e)}, {ar(b + e)}")
            for e in range(4): A(f"v_mul_f32 {vr(V_TMP + 8 + e)}, {vr(V_TMP + 3 + rt)}, {vr(V_TMP + 8 + e)}")
            for e in range(4): A(f"v_accvgpr_write_b32 {ar(b + e)}, {vr(V_TMP + 8 + e)}")
    A(f"s_setpc_b64 {sr(S_RET, 2)}")

    A("L_loader:")
    if opts.codepf:
        A("s_getpc_b64 s[76:77]")
        A("L_pc:")
        A("s_sub_u32 s76, s76, L_pc - main_kernel")
        A("s_subb_u32 s77, s77, 0")
        A("s_mov_b32 s78, L_code_end - main_kernel")
        A("s_mov_b32 s79, 0x20000")
        A("v_lshlrev_b32 v8, 6, v0")
        A("; CODEPF_PLACEHOLDER")
    A("v_and_b32 v2, 31, v0")
    A("v_lshrrev_b32 v3, 5, v0")
    A("v_xor_b32 v4, v2, v3")
    A("v_lshlrev_b32 v4, 4, v4")
    A("v_lshl_add_u32 v4, v3, 9, v4")
    A("v_lshlrev_b32 v5, 3, v3")
    A("v_xor_b32 v5, v2, v5")
    A("v_lshlrev_b32 v5, 4, v5")
    A("v_lshl_add_u32 v5, v3, 9, v5")
    A("v_lshlrev_b32 v6, 2, v3")
    A("v_xor_b32 v6, v2, v6")
    A("v_lshlrev_b32 v6, 4, v6")
    A("v_lshl_add_u32 v6, v3, 13, v6")
    A("v_and_b32 v2, 7, v0")
    A("v_lshrrev_b32 v3, 4, v0")
    A("v_lshlrev_b32 v3, 1, v3")
    A("v_xor_b32 v2, v2, v3")
    A("v_lshrrev_b32 v3, 3, v0")
    A("v_mul_u32_u24 v3, 896, v3")
    A("v_lshl_add_u32 v7, v2, 4, v3")
    for s, v in ((S_SLOT, 0), (S_KO, 0), (S_VO, 0), (S_WO, 0), (S_OO, 0), (S_C1056, PIECE), (S_C1024, 1024), (S_C16K, 16384), (S_C7168, 7168)):
        A(f"s_mov_b32 {sr(s)}, {v}")
    def tile(kind, throttle=True):
        v, srd, so, st = {"K": (4, SRD_K, S_KO, S_C1024), "V": (5, SRD_V, S_VO, S_C1024), "W": (6, SRD_W, S_WO, S_C16K), "O": (7, SRD_O, S_OO, S_C7168)}[kind]
        if throttle: A("s_waitcnt vmcnt(47)")
        A(f"s_mov_b32 m0, {sr(S_SLOT)}")
        A(f"s_add_u32 {sr(S_SLOT)}, {sr(S_SLOT)}, {SLOT}")
        for i in range(16):
            A(f"buffer_load_dwordx4 v{v}, {sr(srd, 4)}, {sr(so)} offen{nt} lds")
            if i < 15: A(f"s_add_u32 m0, m0, {sr(S_C1056)}")
            A(f"s_add_u32 {sr(so)}, {sr(so)}, {sr(st)}")
        A(f"s_cmp_ge_u32 {sr(S_SLOT)}, {NSLOT * SLOT}")
        A(f"s_cselect_b32 {sr(S_SLOT)}, 0, {sr(S_SLOT)}")
    def bar(n=48):
        A(f"s_waitcnt vmcnt({n})")
        A("s_barrier")
    def o_tile(n):
        tile("O")
        if (n - 78) & 1:
            A(f"s_sub_u32 {sr(S_OO)}, {sr(S_OO)}, {2 * 114688 - 128}")
    A(f"s_mov_b32 {sr(S_LCNT)}, 5")
    A("L_ld0:")
    tile("W")
    A(f"s_sub_u32 {sr(S_LCNT)}, {sr(S_LCNT)}, 1")
    A(f"s_cmp_lg_u32 {sr(S_LCNT)}, 0")
    A("s_cbranch_scc1 L_ld0")
    bar()
    A(f"s_mov_b32 {sr(S_LCNT)}, 4")
    A("L_ld1:")
    tile("W"); tile("W"); bar()
    A(f"s_sub_u32 {sr(S_LCNT)}, {sr(S_LCNT)}, 1")
    A(f"s_cmp_lg_u32 {sr(S_LCNT)}, 0")
    A("s_cbranch_scc1 L_ld1")
    tile("W"); tile("K"); bar()
    tile("K"); tile("V"); bar()
    tile("K"); bar()
    A(f"s_mov_b32 {sr(S_LCNT)}, 29")
    A("L_ld2:")
    tile("V"); tile("K"); bar()
    A(f"s_sub_u32 {sr(S_LCNT)}, {sr(S_LCNT)}, 1")
    A(f"s_cmp_lg_u32 {sr(S_LCNT)}, 0")
    A("s_cbranch_scc1 L_ld2")
    tile("V"); tile("V"); bar()
    o_tile(78); o_tile(79); bar()
    o_tile(80); bar()
    A(f"s_mov_b32 {sr(S_LCNT)}, 5")
    A("L_ld3:")
    o_tile(81); o_tile(82); bar()
    A(f"s_sub_u32 {sr(S_LCNT)}, {sr(S_LCNT)}, 1")
    A(f"s_cmp_lg_u32 {sr(S_LCNT)}, 0")
    A("s_cbranch_scc1 L_ld3")
    o_tile(91); bar(32)
    bar(0)
    A("L_end:")
    A("s_endpgm")
    A("L_code_end:")

    A(".globl reduce_kernel")
    A(".p2align 8")
    A(".type reduce_kernel,@function")
    A("reduce_kernel:")
    A("s_cmp_ge_u32 s2, 504")
    A("s_cbranch_scc1 L_end2")
    if opts.stamps: A("s_memrealtime s[30:31]")
    A("s_load_dwordx2 s[12:13], s[0:1], 96")
    A("s_load_dwordx2 s[16:17], s[0:1], 80")
    A("s_lshl_b32 s3, s2, 8")
    A("v_add_u32 v1, s3, v0")
    A("s_mov_b32 s4, 532611")
    A("v_mul_hi_u32 v2, v1, s4")
    A("s_mov_b32 s5, 8064")
    A("v_mul_lo_u32 v3, v2, s5")
    A("v_sub_u32 v3, v1, v3")
    A(f"s_mov_b32 s5, {16 * PART_BYTES}")
    A("v_mul_lo_u32 v4, v2, s5")
    A("v_lshl_add_u32 v4, v3, 4, v4")
    A("s_waitcnt lgkmcnt(0)")
    A(f"s_add_u32 s40, s12, {opts.wsoff}")
    A("s_addc_u32 s41, s13, 0")
    A(f"s_mov_b32 s42, {256 * PART_BYTES}")
    A("s_mov_b32 s43, 0x20000")
    A("s_mov_b32 s44, s16")
    A("s_mov_b32 s45, s17")
    A("s_mov_b32 s46, 2064384")
    A("s_mov_b32 s47, 0x20000")
    A("s_mov_b32 s28, 0")
    for h in range(16):
        A(f"buffer_load_dwordx4 v[{16 + 4 * h}:{19 + 4 * h}], v4, s[40:43], s28 offen{ldp}")
        if h < 15: A(f"s_add_u32 s28, s28, {PART_BYTES}")
    A("v_lshrrev_b32 v5, 7, v3")
    A("v_mul_u32_u24 v6, 57, v5")
    A("v_lshrrev_b32 v6, 9, v6")
    A("v_mul_u32_u24 v7, 9, v6")
    A("v_sub_u32 v7, v5, v7")
    A("v_and_b32 v8, 7, v2")
    A("v_lshrrev_b32 v9, 3, v2")
    A("v_mul_u32_u24 v8, 144, v8")
    A("v_lshl_add_u32 v8, v7, 4, v8")
    A("v_and_b32 v10, 15, v3")
    A("v_add_u32 v8, v8, v10")
    A("v_mul_u32_u24 v8, 1792, v8")
    A("v_mul_u32_u24 v9, 896, v9")
    A("v_add_u32 v8, v8, v9")
    A("v_lshl_add_u32 v8, v6, 7, v8")
    A("v_and_b32 v10, 64, v3")
    A("v_add_u32 v8, v8, v10")
    A("v_lshrrev_b32 v10, 4, v3")
    A("v_and_b32 v10, 3, v10")
    A("v_lshl_add_u32 v8, v10, 3, v8")
    A("s_mov_b32 s6, 0xffff0000")
    for h in range(16):
        A(f"s_waitcnt vmcnt({15 - h})")
        for i in range(4):
            src = 16 + 4 * h + i
            if h == 0:
                A(f"v_lshlrev_b32 v{80 + 2 * i}, 16, v{src}")
                A(f"v_and_b32 v{81 + 2 * i}, s6, v{src}")
            else:
                A(f"v_lshlrev_b32 v10, 16, v{src}")
                A(f"v_and_b32 v11, s6, v{src}")
                A(f"v_add_f32 v{80 + 2 * i}, v{80 + 2 * i}, v10")
                A(f"v_add_f32 v{81 + 2 * i}, v{81 + 2 * i}, v11")
    for i in range(4):
        A(f"v_cvt_pk_bf16_f32 v{12 + i}, v{80 + 2 * i}, v{81 + 2 * i}")
    A("buffer_store_dwordx2 v[12:13], v8, s[44:47], 0 offen")
    A("buffer_store_dwordx2 v[14:15], v8, s[44:47], 0 offen offset:32")
    if opts.stamps:
        A("s_waitcnt vmcnt(0)")
        A("s_memrealtime s[50:51]")
        A("s_waitcnt lgkmcnt(0)")
        A("s_cmp_ge_u32 s2, 256")
        A("s_cbranch_scc0 L_lo")
        A("s_sub_u32 s2, s2, 248")
        A("s_add_u32 s12, s12, 16")
        A("s_addc_u32 s13, s13, 0")
        A("L_lo:")
        A("s_add_u32 s12, s12, 0x8000000")
        A("s_addc_u32 s13, s13, 0")
        A("s_lshl_b32 s14, s2, 9")
        A("s_add_u32 s12, s12, s14")
        A("s_addc_u32 s13, s13, 0")
        A("v_mov_b32 v4, s30")
        A("v_mov_b32 v5, s31")
        A("v_mov_b32 v6, s50")
        A("v_mov_b32 v7, s51")
        A("v_mov_b32 v3, 0")
        A("v_cmp_eq_u32 vcc, 0, v0")
        A("s_and_saveexec_b64 s[20:21], vcc")
        A("s_cbranch_execz L_end2")
        A(f"global_store_dwordx4 v3, v[4:7], s[12:13] offset:{8 * nstamp[0]}")
        A("s_waitcnt vmcnt(0)")
    A("L_end2:")
    A("s_endpgm")
    for name, vg, acc in (("main_kernel", 512, 256), ("reduce_kernel", 88, 88)):
        A('.section .rodata,"a"')
        A(".p2align 6")
        A(f".amdhsa_kernel {name}")
        A(f"  .amdhsa_next_free_vgpr {vg}")
        A("  .amdhsa_next_free_sgpr 102")
        A(f"  .amdhsa_accum_offset {acc}")
        A("  .amdhsa_group_segment_fixed_size 0")
        A("  .amdhsa_kernarg_size 104")
        A("  .amdhsa_user_sgpr_count 2")
        A("  .amdhsa_user_sgpr_kernarg_segment_ptr 1")
        A("  .amdhsa_system_sgpr_workgroup_id_x 1")
        A(".end_amdhsa_kernel")
    txt = "\n".join(x for x in L if x != "") + "\n"
    if opts.codepf:
        n = opts.codepf
        pf = []
        for i in range(n):
            pf.append(f"buffer_load_dword v9, v8, s[76:79], 0 offen")
            pf.append(f"v_add_u32 v8, 4096, v8")
        txt = txt.replace("; CODEPF_PLACEHOLDER", "\n".join(pf))
    return txt, nstamp[0]

if __name__ == "__main__":
    ap = argparse.ArgumentParser()
    ap.add_argument("-o", default="k.s")
    ap.add_argument("--nt", type=int, default=1)
    ap.add_argument("--xnt", type=int, default=0)
    ap.add_argument("--stp", default="sc1")
    ap.add_argument("--ldp", default="")
    ap.add_argument("--stamps", type=int, default=0)
    ap.add_argument("--wsoff", type=int, default=0)
    ap.add_argument("--codepf", type=int, default=0)
    ap.add_argument("--align", type=int, default=1)
    ap.add_argument("--dbg", default="")
    o = ap.parse_args()
    t, n = gen(o)
    open(o.o, "w").write(t)
    print("stamps", n)
```
